```python
import torch

def _softmax(x, axis=-1):
    return torch.softmax(x, dim=axis)
def _gelu(x):
    return torch.nn.functional.gelu(x, approximate="tanh")
def _silu(x):
    return torch.nn.functional.silu(x)
def _sigmoid(x):
    return torch.sigmoid(x)
def _layernorm(x, axis=-1, eps=1e-5):
    m = x.mean(dim=axis, keepdim=True)
    v = x.var(dim=axis, keepdim=True, unbiased=False)
    return (x - m) / torch.sqrt(v + eps)
def _scatter_add(tgt, idx, src, axis=0):
    return tgt.clone().index_add_(axis, idx, src)
def _segment_sum(src, seg, n):
    out = torch.zeros((n,) + src.shape[1:], dtype=src.dtype)
    return out.index_add_(0, seg, src)
def _pad(x, pw):
    flat = tuple(v for pair in reversed(pw) for v in pair)
    return torch.nn.functional.pad(x, flat)

kernel_name = 'interleave_layers__mha_block__glu_gated_swiglu__prompt'

def setup_inputs():

    _w = (lambda a: (lambda t: t.to(torch.bfloat16) if t.is_floating_point() else t)(torch.as_tensor(a)))
    def _A_setup():
        B, S, D, H = 1, 2048, 512, 32
        return {
            "x": _w((lambda *s: torch.randn(*s, dtype=torch.bfloat16) * 0.05)(B, S, D)),
            "wqkv": _w((lambda *s: torch.randn(*s, dtype=torch.bfloat16) * 0.05)(D, 3 * D)),
            "wo": _w((lambda *s: torch.randn(*s, dtype=torch.bfloat16) * 0.05)(D, D)),
        }
    _A_in = _A_setup()

    def _B_setup():
        B, S, D, F = 1, 2048, 512, 1792
        return {
            "x": _w((lambda *s: torch.randn(*s, dtype=torch.bfloat16) * 0.05)(B, S, D)),
            "w1": _w((lambda *s: torch.randn(*s, dtype=torch.bfloat16) * 0.4)(D, F) * (2.0 / D) ** 0.5),
            "w3": _w((lambda *s: torch.randn(*s, dtype=torch.bfloat16) * 0.4)(D, F) * (2.0 / D) ** 0.5),
            "w2": _w((lambda *s: torch.randn(*s, dtype=torch.bfloat16) * 0.4)(F, D) * (2.0 / F) ** 0.5),
        }
    _B_in = _B_setup()

    return {
        "A_x": _A_in["x"],
        "A_wqkv": _A_in["wqkv"],
        "A_wo": _A_in["wo"],
        "B_x": _B_in["x"],
        "B_w1": _B_in["w1"],
        "B_w3": _B_in["w3"],
        "B_w2": _B_in["w2"],
    }

def reference(A_x, A_wqkv, A_wo, B_x, B_w1, B_w3, B_w2):
    def _A_ref(x, wqkv, wo):
        B, S, D = x.shape
        H = 32
        Dh = D // H
        qkv = (lambda x, *d: x.permute(*d))((x @ wqkv).reshape(B, S, 3, H, Dh), 2, 0, 3, 1, 4)
        q, k, v = qkv[0], qkv[1], qkv[2]
        scores = torch.einsum("bhqd,bhkd->bhqk", q, k) * (Dh ** -0.5)
        p = _softmax(scores, axis=-1)
        o = torch.einsum("bhqk,bhkd->bhqd", p, v)
        return (lambda x, *d: x.permute(*d))(o, 0, 2, 1, 3).reshape(B, S, D) @ wo

    def _B_ref(x, w1, w3, w2):
        gate = torch.einsum("bsd,df->bsf", x, w1)
        up = torch.einsum("bsd,df->bsf", x, w3)
        h = _silu(gate) * up
        out = torch.einsum("bsf,fd->bsd", h, w2)
        return out

    x = A_x
    x = x + _A_ref(_layernorm(x, axis=-1), A_wqkv, A_wo)
    x = x + _B_ref(_layernorm(x, axis=-1), B_w1, B_w3, B_w2)
    x = x + _A_ref(_layernorm(x, axis=-1), A_wqkv, A_wo)
    x = x + _B_ref(_layernorm(x, axis=-1), B_w1, B_w3, B_w2)
    return x
```

```python
import re

TRANS = ("v_exp_f32", "v_log_f32", "v_rcp_f32", "v_rsq_f32", "v_sqrt_f32", "v_sin_f32", "v_cos_f32")


def _regs(tok):
    tok = tok.strip()
    tok = tok.lstrip("-")
    m = re.fullmatch(r"abs\((.*)\)", tok) or re.fullmatch(r"\|(.*)\|", tok)
    if m:
        tok = m.group(1)
    m = re.fullmatch(r"([vas])(\d+)", tok)
    if m:
        return [tok]
    m = re.fullmatch(r"([vas])\[(\d+):(\d+)\]", tok)
    if m:
        return [f"{m.group(1)}{i}" for i in range(int(m.group(2)), int(m.group(3)) + 1)]
    if tok in ("vcc", "vcc_lo", "vcc_hi"):
        return ["vcc"]
    if tok in ("exec", "exec_lo", "exec_hi"):
        return ["exec"]
    if tok == "m0":
        return ["m0"]
    return []


class Ins:
    __slots__ = ("text", "op", "defs", "uses", "kind", "srcc", "ab", "passes", "nop", "store_data", "lds_dma")

    def __init__(self, text):
        self.text = text
        t = text.split(";")[0].strip()
        self.defs, self.uses, self.srcc, self.ab, self.store_data = set(), set(), set(), set(), set()
        self.kind, self.passes, self.nop, self.lds_dma = "other", 0, 0, False
        if not t or t.endswith(":") or t.startswith("."):
            self.op = t
            self.kind = "label" if t.endswith(":") else "directive"
            return
        parts = t.split(None, 1)
        op = self.op = parts[0]
        rest = parts[1] if len(parts) > 1 else ""
        ops, depth, cur = [], 0, ""
        for ch in rest:
            if ch in "[(":
                depth += 1
            if ch in "])":
                depth -= 1
            if ch == "," and depth == 0:
                ops.append(cur)
                cur = ""
            else:
                cur += ch
        if cur.strip():
            ops.append(cur)
        mods = ""
        if ops:
            last = ops[-1].strip().split(None, 1)
            ops[-1] = last[0]
            mods = last[1] if len(last) > 1 else ""
        R = [_regs(o) for o in ops]
        if op == "s_nop":
            self.kind = "nop"
            self.nop = int(ops[0], 0) + 1
        elif op.startswith("v_mfma") or op.startswith("v_smfmac"):
            self.kind = "mfma"
            self.passes = 8 if "32x32" in op else 4
            self.defs = set(R[0])
            self.ab = set(R[1]) | set(R[2])
            if op.startswith("v_smfmac"):
                self.srcc = set(R[0])
                self.ab |= set(R[3])
            else:
                self.srcc = set(R[3])
            self.uses = self.ab | self.srcc
        elif op.startswith("v_"):
            self.kind = "trans" if op.split("_e")[0] in TRANS or op in TRANS else "valu"
            if op.startswith("v_cmp"):
                self.defs = set(R[0])
                self.uses = set(sum(R[1:], []))
            elif op.startswith("v_permlane") and "swap" in op:
                self.defs = set(R[0]) | set(R[1])
                self.uses = set(self.defs)
            elif op.startswith("v_add_co") or op.startswith("v_sub_co"):
                self.defs = set(R[0]) | set(R[1])
                self.uses = set(sum(R[2:], []))
            elif op.startswith("v_addc_co"):
                self.defs = set(R[0]) | set(R[1])
                self.uses = set(sum(R[2:], []))
            else:
                self.defs = set(R[0])
                self.uses = set(sum(R[1:], []))
                if op.startswith("v_fmac") or op.startswith("v_dot2c") or "sdwa" in op or "dpp" in op:
                    self.uses |= set(R[0])
        elif op.startswith("buffer_") or op.startswith("global_"):
            self.kind = "vmem"
            allr = set(sum(R, []))
            if "lds" in mods.split() or "_lds_" in op:
                self.uses = allr | {"m0"}
                self.lds_dma = True
            elif "store" in op or "atomic" in op:
                self.uses = allr
                data = R[0] if op.startswith("buffer_") else R[1]
                if "x3" in op or "x4" in op:
                    self.store_data = set(data)
            elif op in ("buffer_wbl2", "buffer_inv"):
                pass
            else:
                self.defs = set(R[0])
                self.uses = set(sum(R[1:], []))
        elif op.startswith("ds_"):
            self.kind = "ds"
            if "read" in op or "permute" in op or "swizzle" in op:
                self.defs = set(R[0])
                self.uses = set(sum(R[1:], []))
            else:
                self.uses = set(sum(R, []))
        elif op.startswith("s_"):
            self.kind = "salu"
            if op.startswith(("s_cbranch", "s_branch", "s_endpgm", "s_setpc", "s_swappc")):
                self.kind = "branch"
            elif op.startswith(("s_waitcnt", "s_barrier", "s_setprio", "s_sleep")):
                pass
            elif op.startswith("s_cmp") or op.startswith("s_bitcmp"):
                self.uses = set(sum(R, []))
            else:
                self.defs = set(R[0]) if R else set()
                self.uses = set(sum(R[1:], []))
        else:
            raise ValueError("unknown instruction: " + text)


def need_states(prev, cur):
    n = 0
    pv = prev.kind in ("valu", "trans")
    if pv:
        vd = {r for r in prev.defs if r[0] in "va" and r != "vcc"}
        sd = {r for r in prev.defs if r[0] == "s" or r == "vcc"}
        if cur.kind == "mfma" and vd & cur.uses:
            n = max(n, 2)
        if prev.kind == "trans" and cur.kind == "valu" and vd & (cur.uses | cur.defs):
            n = max(n, 1)
        if cur.kind in ("valu", "trans"):
            if cur.op.startswith("v_permlane") and vd & cur.uses:
                n = max(n, 2)
            if cur.op.startswith(("v_readlane", "v_readfirstlane")) and vd & cur.uses:
                n = max(n, 1)
            if "dpp" in cur.op and vd & cur.uses:
                n = max(n, 2)
            if sd & cur.uses:
                n = max(n, 4 if cur.op.startswith(("v_readlane", "v_writelane")) else 2)
            if prev.op.startswith("v_dot") and vd & (cur.uses | cur.defs):
                same_c = cur.op == prev.op and not (vd & set(sum([_regs(x) for x in cur.text.split(";")[0].split(",")[1:3]], [])))
                if not same_c:
                    n = max(n, 3)
            if ("sdwa" in prev.op or "op_sel:" in prev.text) and not prev.op.startswith("v_pk") and vd & (cur.uses | cur.defs):
                n = max(n, 1)
        if prev.op.startswith("v_dot") and cur.kind in ("vmem", "ds", "mfma") and vd & cur.uses:
            n = max(n, 3)
        if cur.kind == "vmem" and sd & cur.uses:
            n = max(n, 5)
        if cur.kind == "salu" and sd & cur.uses:
            n = max(n, 1)
    if prev.kind == "mfma":
        big = prev.passes == 8
        if cur.kind == "mfma":
            if prev.defs & cur.ab:
                n = max(n, 12 if big else 8)
            if prev.defs & cur.srcc and prev.defs != cur.srcc:
                n = max(n, 10 if big else 6)
            if prev.defs & cur.defs and not (prev.defs & cur.srcc):
                n = max(n, 10 if big else 6)
        elif cur.kind in ("valu", "trans", "vmem", "ds"):
            if prev.defs & (cur.uses | cur.defs):
                n = max(n, 12 if big else 8)
            if cur.kind in ("valu", "trans") and prev.srcc & cur.defs:
                n = max(n, 7 if big else 3)
    if prev.kind == "salu" and "m0" in prev.defs and cur.lds_dma:
        n = max(n, 1)
    if prev.store_data and cur.kind != "salu" and prev.store_data & cur.defs:
        n = max(n, 2)
    return n


def states_of(ins, timed):
    if ins.kind == "nop":
        return ins.nop
    if ins.kind in ("label", "directive"):
        return 0
    if timed and ins.kind == "trans":
        return 2
    return 1


def pad_hazards(inss, report=None):
    out = []
    for cur in inss:
        if cur.kind not in ("label", "directive", "nop"):
            need = 0
            dist_plain = dist_timed = 0
            for prev in reversed(out):
                if dist_plain >= 20:
                    break
                n = need_states(prev, cur)
                if n:
                    d = dist_timed if prev.kind == "mfma" else dist_plain
                    need = max(need, n - d)
                dist_plain += states_of(prev, False)
                dist_timed += states_of(prev, True)
            while need > 0:
                k = min(need, 16)
                if report is not None:
                    report.append((k, cur.text))
                out.append(Ins(f"s_nop {k-1}"))
                need -= k
        out.append(cur)
    return out


def check_backedges(inss):
    labels = {i.op[:-1]: n for n, i in enumerate(inss) if i.kind == "label"}
    bad = []
    for n, i in enumerate(inss):
        if i.kind == "branch" and i.op != "s_endpgm":
            tgt = i.text.split(";")[0].split()[-1]
            if tgt not in labels:
                continue
            seq = inss[max(0, n - 24): n + 1] + inss[labels[tgt]: labels[tgt] + 24]
            rep = []
            pad_hazards(seq, rep)
            if rep:
                bad.append((tgt, rep))
    return bad


class Asm:
    def __init__(self):
        self.ins = []
        self.vm = 0
        self.lg = 0
        self.uid = 0

    def __call__(self, text):
        tok = None
        for line in text.split("\n"):
            if not line.strip() or line.strip().startswith(";"):
                continue
            i = Ins(line.strip())
            self.ins.append(i)
            if i.kind == "vmem" and i.op not in ("buffer_inv",):
                self.vm += 1
                tok = ("vm", self.vm)
            elif i.kind == "ds":
                self.lg += 1
                tok = ("lg", self.lg)
        return tok

    def wait(self, *toks):
        vm = [t[1] for t in toks if t and t[0] == "vm"]
        lg = [t[1] for t in toks if t and t[0] == "lg"]
        s = ""
        if vm:
            n = self.vm - max(vm)
            if n <= 62:
                s += f" vmcnt({n})"
            else:
                raise ValueError("vmcnt too large %d" % n)
        if lg:
            n = self.lg - max(lg)
            assert n <= 15, n
            s += f" lgkmcnt({n})"
        if s:
            self("s_waitcnt" + s)

    def label(self, stem):
        self.uid += 1
        return f"L_{stem}_{self.uid}"

    def text(self, verbose=False):
        rep = []
        padded = pad_hazards(self.ins, rep)
        bad = check_backedges(padded)
        if bad:
            for b in bad:
                print("BACKEDGE HAZARD", b)
            raise SystemExit(1)
        if verbose:
            for k, t in rep:
                print(f"  pad {k} before {t}")
        out = []
        for i in padded:
            out.append(i.text if i.kind in ("label", "directive") else "  " + i.text)
        return "\n".join(out) + "\n"
```

```python
import sys, os, struct, math
sys.path.insert(0, os.path.dirname(os.path.abspath(__file__)))
from asmlib import Asm

NAME = "interleave_layers__mha_block__glu_gated_swiglu__prompt"

FLG = 0x0000000
TS = 0x0010000
STAT = 0x0080000
WQ = 0x0200000
WO = 0x0390000
W2F = 0x0410000
WU = 0x05D0000
XF = 0x0A00000
QF = 0x1200000
OF = 0x1600000
KV = 0x1A00000
HF = 0x2200000
WS_SIZE = 0x10000000
LDS_BYTES = 163840
RED = 101376


def f2u(x):
    return struct.unpack("<I", struct.pack("<f", x))[0]


LOG2E = 1.4426950408889634

vL16, vVOFF, vIDX, vRES = 1, 2, 3, 4
vP2, vP3, vP4, vP5, vP1 = 12, 13, 14, 15, 16
vL16B, vL16C = 17, 18
vL4 = 19
vKST, vVST = 20, 21
vT0, vTS = 22, 23
WS = "s[4:7]"
SA, SB = "s[8:11]", "s[12:15]"
sW, sXCD, sIDX, sL, sBUD, sPH = 16, 17, 18, 19, 20, 21
sTB, sHP, sT64, sFB, sTB4, sJ4 = 22, 23, 24, 25, 26, 27
sVM = "s[28:29]"
sFLAG = 30
sT = list(range(31, 45))
sTSI = 45
sOUT, sDBG = 48, 50
sX, sWQKV, sWOp, sW1, sW3, sW2p = 52, 54, 56, 60, 62, 64
sXIN, sXMID, sXOUT, sQ, sKV, sO, sH, sSIN, sSMID, sSOUT = range(66, 76)
sFB32, sTB32B = 76, 77
sRETRY = 78


def vr(a, n=4):
    return f"v[{a}:{a+n-1}]"


def ar(a, n=4):
    return f"a[{a}:{a+n-1}]"


class Gen:
    def __init__(self, stamps=False, stop_after=None, p4map="A", nw2_in=32, passes=((0, 1), (2,), (3,), (4,), (5,), (6,))):
        self.a = Asm()
        self.stamps = stamps
        self.stop_after = stop_after
        self.p4map = p4map
        self.nw2_in = nw2_in
        self.passes = passes
        self.stamp_names = []

    def stamp(self, name):
        if not self.stamps:
            return
        self.stamp_names.append(name)
        a = self.a
        a(f"""s_memrealtime s[46:47]
s_waitcnt lgkmcnt(0)
s_lshl_b64 exec, 1, s{sTSI}
v_mov_b32 v{vTS}, s46
s_mov_b64 exec, -1
s_add_u32 s{sTSI}, s{sTSI}, 1""")

    def srd(self, dst, ptr, size):
        b = int(dst[2:].split(":")[0])
        self.a(f"""s_mov_b32 s{b}, s{ptr}
s_mov_b32 s{b+1}, s{ptr+1}
s_mov_b32 s{b+2}, {size}
s_mov_b32 s{b+3}, 0x20000""")

    def signal(self):
        a = self.a
        skip = a.label("sig")
        a(f"""s_add_u32 s{sPH}, s{sPH}, 1
s_waitcnt vmcnt(0) lgkmcnt(0)
s_barrier
s_cmp_lg_u32 s{sW}, 0
s_cbranch_scc1 {skip}
v_mov_b32 v{vT0}, s{sPH}
s_mov_b64 exec, 1
buffer_store_dword v{vT0}, off, {WS}, s{sFLAG} sc1
s_mov_b64 exec, -1
{skip}:""")

    def poll(self, vaddr, srd=WS, need=None):
        a = self.a
        loop, done = a.label("poll"), a.label("pdone")
        need = need or f"s{sPH}"
        a(f"""{loop}:
buffer_load_dword v{vT0}, v{vaddr}, {srd}, 0 offen sc1
s_waitcnt vmcnt(0)
v_cmp_gt_u32 vcc, {need}, v{vT0}
s_cbranch_vccz {done}
s_sub_u32 s{sBUD}, s{sBUD}, 1
s_cbranch_scc0 {loop}
s_mov_b32 s{sBUD}, 0
{done}:""")

    def wait_flags(self, vaddr):
        self.poll(vaddr)
        self.a("s_barrier")

    def maybe_stop(self, tag):
        if self.stop_after == tag:
            self.a("s_branch L_end")

    def stats_store(self, src16, tmp, soff):
        a = self.a
        s, q, s2, q2 = tmp, tmp + 1, tmp + 2, tmp + 3
        a(f"v_add_f32 v{s}, v{src16}, v{src16+1}")
        a(f"v_mul_f32 v{q}, v{src16}, v{src16}")
        a(f"v_add_f32 v{s2}, v{src16+2}, v{src16+3}")
        a(f"v_mul_f32 v{q2}, v{src16+1}, v{src16+1}")
        for i in range(2, 16):
            a(f"v_fmac_f32 v{q if i % 2 == 0 else q2}, v{src16+i}, v{src16+i}")
            if i >= 4:
                a(f"v_add_f32 v{s if i % 2 == 0 else s2}, v{s if i % 2 == 0 else s2}, v{src16+i}")
        a(f"v_add_f32 v{s}, v{s}, v{s2}")
        a(f"v_add_f32 v{q}, v{q}, v{q2}")
        a(f"v_permlane32_swap_b32 v{s}, v{q}")
        a(f"v_add_f32 v{s}, v{s}, v{q}")
        return a(f"buffer_store_dword v{s}, v{vL4}, {WS}, s{soff} offen sc1")

    def unpack_res(self, dst):
        a = self.a
        for i in range(8):
            a(f"v_lshlrev_b32 v{dst+2*i}, 16, v{vRES+i}")
            a(f"v_and_b32 v{dst+2*i+1}, 0xffff0000, v{vRES+i}")

    def stats_load(self, dst, sbase, tb32_s, st):
        a = self.a
        a(f"s_lshl_b32 s{st}, s{tb32_s}, 12")
        a(f"s_add_u32 s{st}, s{st}, s{sbase}")
        tok = None
        for i in range(16):
            tok = a(f"buffer_load_dword v{dst+i}, v{vL4}, {WS}, s{st} offen offset:{256*i} sc1")
        return tok

    def stats_math(self, src, mean, rstd, bx):
        L = []
        n = 16
        while n > 1:
            n //= 2
            for i in range(n):
                L.append(f"v_add_f32 v{src+i}, v{src+i}, v{src+i+n}")
        L.append(f"v_mov_b32 v{src+1}, v{src}")
        L.append("s_nop 1")
        L.append(f"v_permlane32_swap_b32 v{src}, v{src+1}")
        L.append(f"v_mul_f32 v{mean}, {f2u(1/512):#x}, v{src}")
        L.append(f"v_mul_f32 v{src+1}, {f2u(1/512):#x}, v{src+1}")
        L.append(f"v_fma_f32 v{src+1}, -v{mean}, v{mean}, v{src+1}")
        L.append(f"v_max_f32 v{src+1}, 0, v{src+1}")
        L.append(f"v_add_f32 v{src+1}, {f2u(1e-5):#x}, v{src+1}")
        L.append(f"v_rsq_f32 v{rstd}, v{src+1}")
        for i in range(4):
            L.append(f"v_cvt_pk_bf16_f32 v{bx+i}, -v{mean}, -v{mean}")
        return L

    def lds_addr(self, off):
        if off < 65536:
            return vL16, off
        if off < 131072:
            return vL16B, off - 65536
        return vL16C, off - 131072

    def prologue(self):
        a = self.a
        a(f"""s_cmp_ge_u32 s2, 256
s_cbranch_scc1 L_exit
s_load_dwordx4 s[52:55], s[0:1], 0
s_load_dwordx4 s[56:59], s[0:1], 16
s_load_dwordx4 s[60:63], s[0:1], 32
s_load_dwordx2 s[64:65], s[0:1], 48
s_load_dwordx4 s[48:51], s[0:1], 56
s_load_dwordx2 s[4:5], s[0:1], 72
v_lshrrev_b32 v{vT0}, 6, v0
v_and_b32 v0, 63, v0
v_readfirstlane_b32 s{sW}, v{vT0}
v_lshlrev_b32 v{vL16}, 4, v0
v_lshlrev_b32 v{vL4}, 2, v0
v_add_u32 v{vL16B}, 0x10000, v{vL16}
v_add_u32 v{vL16C}, 0x20000, v{vL16}
v_mov_b32 v{vIDX}, 0xdddddddd
v_mov_b32 v{vTS}, 0
s_mov_b32 s{sTSI}, 0
s_mov_b32 s28, 0xffff
s_mov_b32 s29, 0xffff
s_mov_b32 s{sBUD}, 0x40000
s_mov_b32 s{sPH}, 0
s_mov_b32 s{sL}, 0
s_lshl_b32 s{sFLAG}, s2, 7
s_and_b32 s{sXCD}, s2, 7
s_lshr_b32 s{sIDX}, s2, 3
""")
        t0, t1, t2 = sT[0], sT[1], sT[2]
        a(f"""s_lshr_b32 s{t0}, s{sXCD}, 1
s_lshl_b32 s{t0}, s{t0}, 2
s_lshr_b32 s{t1}, s{sIDX}, 3
s_add_u32 s{sTB}, s{t0}, s{t1}
s_and_b32 s{t0}, s{sXCD}, 1
s_lshl_b32 s{t0}, s{t0}, 3
s_and_b32 s{sFB}, s{sIDX}, 7
s_add_u32 s{sHP}, s{t0}, s{sFB}
s_lshl_b32 s{t0}, s{sXCD}, 2
s_add_u32 s{sT64}, s{t0}, s{t1}
""")
        if self.p4map == "A":
            a(f"s_mov_b32 s{sTB4}, s{sTB}\ns_mov_b32 s{sJ4}, s{sHP}")
        else:
            a(f"""s_lshl_b32 s{t0}, s{sXCD}, 1
s_lshr_b32 s{t1}, s{sIDX}, 4
s_add_u32 s{sTB4}, s{t0}, s{t1}
s_and_b32 s{sJ4}, s{sIDX}, 15""")
        a(f"""s_and_b32 s{t0}, s{sW}, 1
s_lshl_b32 s{sFB32}, s{sFB}, 1
s_add_u32 s{sFB32}, s{sFB32}, s{t0}
s_lshr_b32 s{t0}, s{sW}, 1
s_lshl_b32 s{sTB32B}, s{sT64}, 1
s_add_u32 s{sTB32B}, s{sTB32B}, s{t0}
""")
        x, y, z = 24, 25, 26
        a(f"""v_lshrrev_b32 v{x}, 5, v0
v_and_b32 v{y}, 15, v0
v_lshlrev_b32 v{y}, 4, v{y}
v_lshl_or_b32 v{vVOFF}, v{x}, 8, v{y}
v_bfe_u32 v{y}, v0, 4, 1
v_lshl_or_b32 v{vVST}, v{y}, 17, v{vVOFF}
v_and_b32 v{x}, 0x33, v0
v_bfe_u32 v{y}, v0, 2, 1
v_bfe_u32 v{z}, v0, 3, 1
v_lshl_or_b32 v{x}, v{y}, 3, v{x}
v_lshl_or_b32 v{x}, v{z}, 2, v{x}
v_lshlrev_b32 v{vKST}, 4, v{x}
""")
        i = 27
        a(f"""v_and_b32 v{i}, 3, v0
s_lshl_b32 s{t0}, s{sW}, 2
v_add_u32 v{i}, s{t0}, v{i}
""")

        def wgA(dst, tb, hp):
            a(f"""v_lshrrev_b32 v{x}, 2, v{tb}
v_lshrrev_b32 v{y}, 3, v{hp}
v_lshl_add_u32 v{x}, v{x}, 1, v{y}
v_and_b32 v{y}, 3, v{tb}
v_lshl_add_u32 v{x}, v{y}, 6, v{x}
v_and_b32 v{y}, 7, v{hp}
v_lshl_add_u32 v{x}, v{y}, 3, v{x}
v_lshlrev_b32 v{dst}, 7, v{x}""")

        def wgB(dst, tbs):
            a(f"""s_lshl_b32 s{t0}, s{tbs}, 1
v_lshrrev_b32 v{x}, 3, v{i}
v_add_u32 v{x}, s{t0}, v{x}
v_lshrrev_b32 v{y}, 2, v{x}
v_and_b32 v{x}, 3, v{x}
v_lshl_add_u32 v{x}, v{x}, 6, v{y}
v_and_b32 v{y}, 7, v{i}
v_lshl_add_u32 v{x}, v{y}, 3, v{x}
v_lshlrev_b32 v{dst}, 7, v{x}""")

        c = 28
        a(f"v_mov_b32 v{c}, s{sHP}")
        wgA(vP2, i, c)
        a(f"s_lshr_b32 s{t1}, s{sT64}, 1\nv_mov_b32 v{c}, s{t1}")
        wgA(vP3, c, i)
        if self.p4map == "A":
            a(f"v_mov_b32 v{vP5}, v{vP3}")
        else:
            a(f"""s_lshr_b32 s{t0}, s{t1}, 1
s_and_b32 s{t2}, s{t1}, 1
s_lshl_b32 s{t2}, s{t2}, 7
s_add_u32 s{t0}, s{t0}, s{t2}
v_lshlrev_b32 v{x}, 3, v{i}
v_add_u32 v{x}, s{t0}, v{x}
v_lshlrev_b32 v{vP5}, 7, v{x}""")
        wgB(vP4, sTB4)
        wgB(vP1, sTB)
        a(f"""s_waitcnt lgkmcnt(0)
s_mov_b32 s6, {WS_SIZE:#x}
s_mov_b32 s7, 0x20000""")
        self.stamp("start")
        skip = a.label("noreset")
        a(f"""s_cmp_lg_u32 s2, 0
s_cbranch_scc1 {skip}
s_lshl_b32 s{t0}, s{sW}, 13
v_lshlrev_b32 v{x}, 7, v0
v_mov_b32 v{y}, 0
buffer_store_dword v{y}, v{x}, {WS}, s{t0} offen sc1
s_waitcnt vmcnt(0)
s_barrier""")
        self.srd(SA, sDBG, 256)
        a(f"""v_mov_b32 v{y}, 1
s_cmp_lg_u32 s{sW}, 0
s_cbranch_scc1 {skip}
s_mov_b64 exec, 1
buffer_store_dword v{y}, off, {SA}, 0 sc1
s_mov_b64 exec, -1
{skip}:""")

    def p0(self):
        a = self.a
        t = sT
        self.srd(SA, sX, 2048 * 512 * 2)
        x, y, z = 24, 25, 26
        a(f"""v_and_b32 v{x}, 31, v0
v_lshrrev_b32 v{y}, 5, v0
v_lshlrev_b32 v{x}, 10, v{x}
v_lshl_or_b32 v{x}, v{y}, 4, v{x}
s_lshl_b32 s{t[0]}, s{sTB32B}, 15
s_lshl_b32 s{t[1]}, s{sFB32}, 6
s_add_u32 s{t[0]}, s{t[0]}, s{t[1]}
buffer_load_dwordx4 {vr(vRES)}, v{x}, {SA}, s{t[0]} offen
buffer_load_dwordx4 {vr(vRES+4)}, v{x}, {SA}, s{t[0]} offen offset:32""")
        krow, c4 = 27, 28
        a(f"""v_lshrrev_b32 v{x}, 5, v0
v_bfe_u32 v{y}, v0, 2, 2
v_lshl_or_b32 v{krow}, v{x}, 3, v{y}
v_bfe_u32 v{x}, v0, 4, 1
v_and_b32 v{y}, 1, v0
v_bfe_u32 v{z}, v0, 1, 1
v_lshlrev_b32 v{x}, 2, v{x}
v_lshl_or_b32 v{x}, v{y}, 1, v{x}
v_or_b32 v{c4}, v{x}, v{z}
s_lshl_b32 s{t[0]}, s{sW}, 13""")
        sLB = t[0]
        sSRC, sDST, sDSTEP, sEXT, sSTR, sKQ = t[1], t[2], t[3], t[4], t[5], t[6]
        Lsingle, Lqkv, Lwo, Lw2, Lx = (a.label(n) for n in ("single", "qkv", "wo", "w2", "xpart"))
        FR = 32
        ACC = 29
        vA = 30

        def finish(rowbytes, dual):
            a("s_waitcnt vmcnt(0)")
            toks = []
            for ks in range(8):
                for jj in range(2):
                    toks.append(a(f"ds_read_b64_tr_b16 {vr(FR+4*ks+2*jj, 2)}, v{vA} offset:{(16*ks+4*jj)*rowbytes}"))
                if ks == 3:
                    a("s_waitcnt lgkmcnt(0)")
            a(f"v_mov_b32 v{ACC}, 0\ns_mov_b32 s{t[7]}, 0x3f803f80")
            a("s_waitcnt lgkmcnt(0)")
            for ks in range(8):
                a(f"buffer_store_dwordx4 {vr(FR+4*ks)}, v{vL16}, {WS}, s{sDST} offen sc1")
                if ks < 7:
                    a(f"s_add_u32 s{sDST}, s{sDST}, s{sDSTEP}")
            a(f"s_cmp_eq_u32 s{sEXT}, 0\ns_cbranch_scc1 {Lx}")
            for i in range(32):
                a(f"v_dot2_f32_bf16 v{ACC}, v{FR+i}, s{t[7]}, v{ACC}")
            a(f"""v_and_b32 v{x}, 0xffff0000, v{ACC}
v_sub_f32 v{y}, v{ACC}, v{x}
v_cvt_pk_bf16_f32 v{x}, v{x}, v{y}
buffer_store_dword v{x}, v{vL16}, {WS}, s{sEXT} offen sc1
s_branch {Lx}""")

        a(f"""s_cmp_ge_u32 s2, 232
s_cbranch_scc1 {Lx}
s_cmp_ge_u32 s2, 112
s_cbranch_scc1 {Lsingle}""")
        assert all((g * 9363) >> 16 == g // 7 for g in range(112))
        g, j, b = t[8], t[9], t[10]
        a(f"""s_and_b32 s{sKQ}, s2, 3
s_and_b32 s{g}, s2, 0xfc
s_add_u32 s{g}, s{g}, s{sW}
s_mul_i32 s{j}, s{g}, 9363
s_lshr_b32 s{j}, s{j}, 16
s_mul_i32 s{sDST}, s{g}, {33*1024}
s_add_u32 s{sDST}, s{sDST}, {WU:#x}
s_lshl_b32 s{sEXT}, s{sKQ}, 2
s_add_u32 s{sEXT}, s{sEXT}, s{sDST}
s_add_u32 s{sEXT}, s{sEXT}, {32*1024}
s_lshl_b32 s{b}, s{sKQ}, 13
s_add_u32 s{sDST}, s{sDST}, s{b}
s_mov_b32 s{sDSTEP}, 1024
s_mul_i32 s{sSRC}, s{sKQ}, {128*3584}
s_lshl_b32 s{b}, s{g}, 5
s_add_u32 s{sSRC}, s{sSRC}, s{b}
s_movk_i32 s{sSTR}, 3584
v_lshrrev_b32 v{x}, 1, v0
v_and_b32 v{y}, 1, v0
v_mul_u32_u24 v{x}, s{sSTR}, v{x}
v_lshl_add_u32 v{x}, v{y}, 4, v{x}""")
        self.srd(SA, sW1, 512 * 1792 * 2)
        self.srd(SB, sW3, 512 * 1792 * 2)
        for i in range(4):
            a(f"s_add_u32 m0, s{sLB}, {i*1024}\ns_nop 0")
            a(f"buffer_load_dwordx4 v{x}, {SA}, s{sSRC} offen lds")
            a(f"s_add_u32 m0, s{sLB}, {4096+i*1024}\ns_nop 0")
            a(f"buffer_load_dwordx4 v{x}, {SB}, s{sSRC} offen lds")
            if i < 3:
                a(f"s_add_u32 s{sSRC}, s{sSRC}, {32*3584}")
        a(f"""v_lshrrev_b32 v{y}, 2, v{c4}
v_and_b32 v{z}, 3, v{c4}
v_lshlrev_b32 v{y}, 12, v{y}
v_lshl_or_b32 v{y}, v{krow}, 5, v{y}
v_lshl_or_b32 v{y}, v{z}, 3, v{y}
v_add_u32 v{vA}, s{sLB}, v{y}""")
        finish(32, True)
        blk, u = t[8], t[9]
        Lgo = a.label("sgo")
        a(f"""{Lsingle}:
s_cmp_ge_u32 s2, 176
s_cbranch_scc1 {Lw2}
s_cmp_ge_u32 s2, 160
s_cbranch_scc1 {Lwo}""")
        a(f"""s_sub_u32 s{u}, s2, 112
s_and_b32 s{blk}, s{u}, 0xfe
s_and_b32 s{t[10]}, s{sW}, 1
s_add_u32 s{blk}, s{blk}, s{t[10]}
s_and_b32 s{sKQ}, s{u}, 1
s_lshl_b32 s{sKQ}, s{sKQ}, 1
s_lshr_b32 s{t[10]}, s{sW}, 1
s_add_u32 s{sKQ}, s{sKQ}, s{t[10]}
s_movk_i32 s{sSTR}, 3072
s_and_b32 s{t[10]}, s{blk}, 15
s_mul_i32 s{sDST}, s{t[10]}, {99*1024}
s_lshr_b32 s{t[10]}, s{blk}, 4
s_lshl_b32 s{t[10]}, s{t[10]}, 10
s_add_u32 s{sDST}, s{sDST}, s{t[10]}
s_add_u32 s{sDST}, s{sDST}, {WQ:#x}
s_lshl_b32 s{sEXT}, s{sKQ}, 2
s_add_u32 s{sEXT}, s{sEXT}, s{sDST}
s_add_u32 s{sEXT}, s{sEXT}, {96*1024}
s_mul_i32 s{t[10]}, s{sKQ}, {8*3072}
s_add_u32 s{sDST}, s{sDST}, s{t[10]}
s_movk_i32 s{sDSTEP}, 3072""")
        self.srd(SA, sWQKV, 512 * 1536 * 2)
        a(f"s_branch {Lgo}")
        a(f"""{Lwo}:
s_sub_u32 s{u}, s2, 160
s_and_b32 s{blk}, s{u}, 0xfe
s_and_b32 s{t[10]}, s{sW}, 1
s_add_u32 s{blk}, s{blk}, s{t[10]}
s_and_b32 s{sKQ}, s{u}, 1
s_lshl_b32 s{sKQ}, s{sKQ}, 1
s_lshr_b32 s{t[10]}, s{sW}, 1
s_add_u32 s{sKQ}, s{sKQ}, s{t[10]}
s_movk_i32 s{sSTR}, 1024
s_lshl_b32 s{sDST}, s{blk}, 15
s_lshl_b32 s{t[10]}, s{sKQ}, 13
s_add_u32 s{sDST}, s{sDST}, s{t[10]}
s_add_u32 s{sDST}, s{sDST}, {WO:#x}
s_mov_b32 s{sEXT}, 0
s_movk_i32 s{sDSTEP}, 1024""")
        self.srd(SA, sWOp, 512 * 512 * 2)
        a(f"s_branch {Lgo}")
        a(f"""{Lw2}:
s_sub_u32 s{u}, s2, 176
s_and_b32 s{blk}, s{u}, 7
s_lshl_b32 s{blk}, s{blk}, 1
s_and_b32 s{t[10]}, s{sW}, 1
s_add_u32 s{blk}, s{blk}, s{t[10]}
s_lshr_b32 s{sKQ}, s{u}, 3
s_lshl_b32 s{sKQ}, s{sKQ}, 1
s_lshr_b32 s{t[10]}, s{sW}, 1
s_add_u32 s{sKQ}, s{sKQ}, s{t[10]}
s_movk_i32 s{sSTR}, 1024
s_mul_i32 s{sDST}, s{blk}, {112*1024}
s_lshl_b32 s{t[10]}, s{sKQ}, 13
s_add_u32 s{sDST}, s{sDST}, s{t[10]}
s_add_u32 s{sDST}, s{sDST}, {W2F:#x}
s_mov_b32 s{sEXT}, 0
s_movk_i32 s{sDSTEP}, 1024""")
        self.srd(SA, sW2p, 1792 * 512 * 2)
        a(f"""{Lgo}:
s_mul_i32 s{sSRC}, s{sKQ}, s{sSTR}
s_lshl_b32 s{sSRC}, s{sSRC}, 7
s_lshl_b32 s{t[10]}, s{blk}, 6
s_add_u32 s{sSRC}, s{sSRC}, s{t[10]}
s_lshl_b32 s{t[10]}, s{sSTR}, 4
v_lshrrev_b32 v{x}, 2, v0
v_and_b32 v{y}, 3, v0
v_mul_u32_u24 v{x}, s{sSTR}, v{x}
v_lshl_add_u32 v{x}, v{y}, 4, v{x}""")
        for i in range(8):
            a(f"s_add_u32 m0, s{sLB}, {i*1024}\ns_nop 0")
            a(f"buffer_load_dwordx4 v{x}, {SA}, s{sSRC} offen lds")
            if i < 7:
                a(f"s_add_u32 s{sSRC}, s{sSRC}, s{t[10]}")
        a(f"""v_lshlrev_b32 v{y}, 6, v{krow}
v_lshl_or_b32 v{y}, v{c4}, 3, v{y}
v_add_u32 v{vA}, s{sLB}, v{y}""")
        finish(64, False)
        a(f"""{Lx}:
s_waitcnt vmcnt(0)
s_lshl_b32 s{t[0]}, s{sTB32B}, 15
s_lshl_b32 s{t[1]}, s{sFB32}, 11
s_add_u32 s{t[0]}, s{t[0]}, s{t[1]}
s_add_u32 s{t[0]}, s{t[0]}, {XF:#x}
buffer_store_dwordx4 {vr(vRES)}, v{vL16}, {WS}, s{t[0]} offen sc1
buffer_store_dwordx4 {vr(vRES+4)}, v{vL16}, {WS}, s{t[0]} offen offset:1024 sc1
s_lshl_b32 s{t[0]}, s{sTB32B}, 12
s_lshl_b32 s{t[1]}, s{sFB32}, 8
s_add_u32 s{t[0]}, s{t[0]}, s{t[1]}
s_add_u32 s{t[0]}, s{t[0]}, {STAT:#x}""")
        self.unpack_res(32)
        self.stats_store(32, 24, t[0])
        self.srd(SA, sDBG, 256)
        a(f"v_mov_b32 v24, 0")
        self.poll(24, SA, "1")
        self.stamp("p0_done")
        self.signal()
        self.maybe_stop("p0")
        a(f"""s_lshl_b32 s{t[0]}, s{sW}, 6
v_add_u32 v24, s{t[0]}, v0
v_lshlrev_b32 v24, 7, v24""")
        self.wait_flags(24)
        self.stamp("p0_wait")

    def layer_bases(self):
        a = self.a
        t = sT[0]
        a(f"""s_lshl_b32 s{t}, s{sL}, 22
s_add_u32 s{sXIN}, s{t}, {XF:#x}
s_add_u32 s{sXMID}, s{t}, {XF+0x200000:#x}
s_add_u32 s{sXOUT}, s{t}, {XF+0x400000:#x}
s_add_u32 s{sKV}, s{t}, {KV:#x}
s_lshl_b32 s{t}, s{sL}, 21
s_add_u32 s{sQ}, s{t}, {QF:#x}
s_add_u32 s{sO}, s{t}, {OF:#x}
s_mul_i32 s{t}, s{sL}, 0x700000
s_add_u32 s{sH}, s{t}, {HF:#x}
s_lshl_b32 s{t}, s{sL}, 19
s_add_u32 s{sSIN}, s{t}, {STAT:#x}
s_add_u32 s{sSMID}, s{t}, {STAT+0x40000:#x}
s_add_u32 s{sSOUT}, s{t}, {STAT+0x80000:#x}""")

    def dma_wq(self):
        a = self.a
        t = sT
        a(f"""s_mul_i32 s{t[0]}, s{sHP}, {99*1024}
s_mul_i32 s{t[1]}, s{sW}, {25*1024}
s_min_u32 s{t[1]}, s{t[1]}, {74*1024}
s_add_u32 s{t[0]}, s{t[0]}, s{t[1]}
s_add_u32 s{t[0]}, s{t[0]}, {WQ:#x}
s_mov_b32 m0, s{t[1]}
s_nop 0""")
        for i in range(25):
            a(f"buffer_load_dwordx4 v{vL16}, {WS}, s{t[0]} offen offset:{(i%4)*1024} sc1 lds")
            if i % 4 == 3:
                a(f"s_add_u32 m0, m0, 4096\ns_add_u32 s{t[0]}, s{t[0]}, 4096")

    def load_frags(self, dst_fn, n, sbase, aux="sc1"):
        a = self.a
        toks = []
        for i in range(n):
            toks.append(a(f"buffer_load_dwordx4 {dst_fn(i)}, v{vL16}, {WS}, s{sbase} offen offset:{(i%4)*1024} {aux}"))
            if i % 4 == 3 and i != n - 1:
                a(f"s_add_u32 s{sbase}, s{sbase}, 4096")
        return toks

    def p1(self):
        a = self.a
        t = sT
        tb32 = t[2]
        a(f"""s_lshl_b32 s{tb32}, s{sTB}, 2
s_add_u32 s{tb32}, s{tb32}, s{sW}
s_lshl_b32 s{t[0]}, s{tb32}, 15
s_add_u32 s{t[0]}, s{t[0]}, s{sXIN}""")
        xt = self.load_frags(lambda i: ar(128 + 4 * i), 32, t[0])
        ST = 24
        stt = self.stats_load(ST, sSIN, tb32, t[1])
        AQ, AK, AV, RS = 40, 56, 72, 88
        RING, R = 104, 9
        MEAN, RSTD, CQ, BX, RA, RB = 140, 142, 144, 148, 152, 156
        a.wait(xt[0])
        a("s_barrier")
        n_tot = 33 * 3
        rd = {}

        def issue(n):
            if n < n_tot:
                va, imm = self.lds_addr(n * 1024)
                rd[n] = a(f"ds_read_b128 {vr(RING+4*(n%R))}, v{va} offset:{imm}")

        for n in range(R - 1):
            issue(n)
        side = []
        post = self.stats_math(ST, MEAN, RSTD, BX) + [
            f"v_mul_f32 v{CQ}, {f2u(0.25*LOG2E):#x}, v{RSTD}",
            f"v_and_b32 v{ST}, 0xffff0000, v{RSTD}",
            f"v_sub_f32 v{ST+1}, v{RSTD}, v{ST}",
            f"v_and_b32 v{ST+2}, 0xffff0000, v{ST+1}",
            f"v_sub_f32 v{ST+1}, v{ST+1}, v{ST+2}",
            f"v_cvt_pk_bf16_f32 v{RA}, v{ST}, v{ST+2}",
            f"v_cvt_pk_bf16_f32 v{RA+1}, v{ST+1}, 0",
            f"v_mov_b32 v{RA+2}, 0",
            f"v_mov_b32 v{RA+3}, 0",
            f"v_mov_b32 v{RB}, 0x3f003f00",
            f"v_mov_b32 v{RB+1}, 0x3f003f00",
            f"v_mov_b32 v{RB+2}, 0",
            f"v_mov_b32 v{RB+3}, 0",
        ]
        for n in range(n_tot):
            ks, ty = divmod(n, 3)
            if ks == 20 and ty == 0:
                a.wait(stt)
                side = post
            if ks == 32 and ty == 0:
                for s in side:
                    a(s)
                side = []
                a(f"v_mfma_f32_32x32x16_bf16 {vr(RS,16)}, {vr(RA)}, {vr(RB)}, 0")
            w = [rd[n]]
            if ty == 0 and ks < 21:
                w.append(xt[ks])
            a.wait(*w)
            acc = (AQ, AK, AV)[ty]
            c = vr(acc, 16) if ks else "0"
            xb = ar(128 + 4 * ks) if ks < 32 else vr(BX)
            wf = vr(RING + 4 * (n % R))
            if ty < 2:
                a(f"v_mfma_f32_32x32x16_bf16 {vr(acc,16)}, {wf}, {xb}, {c}")
            else:
                a(f"v_mfma_f32_32x32x16_bf16 {vr(acc,16)}, {xb}, {wf}, {c}")
            issue(n + R - 1)
            for _ in range(2):
                if side:
                    a(side.pop(0))
        self.stamp("p1_mma")
        a(f"""s_lshl_b32 s{t[0]}, s{sHP}, 7
s_add_u32 s{t[0]}, s{t[0]}, s{tb32}
s_lshl_b32 s{t[1]}, s{t[0]}, 10
s_add_u32 s{t[1]}, s{t[1]}, s{sQ}
s_add_u32 s{t[3]}, s{t[1]}, 0x10000
s_lshl_b32 s{t[0]}, s{t[0]}, 11
s_add_u32 s{t[0]}, s{t[0]}, s{sKV}
s_add_u32 s{t[4]}, s{t[0]}, 0x20000""")
        PK = 104
        for i in range(8):
            a(f"v_pk_mul_f32 {vr(AK+2*i,2)}, {vr(AK+2*i,2)}, {vr(RSTD,2)} op_sel_hi:[1,0]")
        for i in range(8):
            a(f"v_cvt_pk_bf16_f32 v{PK+i}, v{AK+2*i}, v{AK+2*i+1}")
        a(f"buffer_store_dwordx4 {vr(PK)}, v{vKST}, {WS}, s{t[0]} offen sc1")
        a(f"buffer_store_dwordx4 {vr(PK+4)}, v{vKST}, {WS}, s{t[4]} offen sc1")
        for i in range(8):
            a(f"v_pk_mul_f32 {vr(AV+2*i,2)}, {vr(AV+2*i,2)}, {vr(RS+2*i,2)}")
        for i in range(8):
            a(f"v_cvt_pk_bf16_f32 v{PK+8+i}, v{AV+2*i}, v{AV+2*i+1}")
        a(f"buffer_store_dwordx4 {vr(PK+8)}, v{vVST}, {WS}, s{t[0]} offen offset:1024 sc1")
        a(f"buffer_store_dwordx4 {vr(PK+12)}, v{vVST}, {WS}, s{t[0]} offen offset:1536 sc1")
        for i in range(8):
            a(f"v_pk_mul_f32 {vr(AQ+2*i,2)}, {vr(AQ+2*i,2)}, {vr(CQ,2)} op_sel_hi:[1,0]")
        for i in range(8):
            a(f"v_cvt_pk_bf16_f32 v{PK+16+i}, v{AQ+2*i}, v{AQ+2*i+1}")
        a(f"buffer_store_dwordx4 {vr(PK+16)}, v{vL16}, {WS}, s{t[1]} offen sc1")
        a(f"buffer_store_dwordx4 {vr(PK+20)}, v{vL16}, {WS}, s{t[3]} offen sc1")
        self.stamp("p1_done")
        self.signal()
        self.maybe_stop("p1")
        self.wait_flags(vP2)
        self.stamp("p1_wait")

    def p2(self):
        a = self.a
        t = sT
        S = (24, 40)
        O = (56, 72)
        C = (88, 104)
        Q = (120, 124)
        RG = 128
        K = lambda i: RG + 12 * (i % 4)
        V0 = lambda i: RG + 12 * (i % 4) + 4
        V1 = lambda i: RG + 12 * (i % 4) + 8
        head, tb32, sA, sB0, sCNT, sDM, sWOs = t[0], t[1], t[2], t[3], t[4], t[5], t[6]
        a(f"""s_lshl_b32 s{head}, s{sHP}, 1
s_and_b32 s{t[7]}, s{sW}, 1
s_add_u32 s{head}, s{head}, s{t[7]}
s_lshl_b32 s{tb32}, s{sTB}, 2
s_and_b32 s{t[7]}, s{sW}, 2
s_add_u32 s{tb32}, s{tb32}, s{t[7]}
s_lshl_b32 s{t[7]}, s{head}, 6
s_add_u32 s{t[7]}, s{t[7]}, s{tb32}
s_lshl_b32 s{t[7]}, s{t[7]}, 10
s_add_u32 s{t[7]}, s{t[7]}, s{sQ}
s_lshl_b32 s{sB0}, s{head}, 17
s_add_u32 s{sB0}, s{sB0}, s{sKV}
s_mov_b32 s{sRETRY}, 0
buffer_load_dwordx4 {vr(Q[0])}, v{vL16}, {WS}, s{t[7]} offen sc1
buffer_load_dwordx4 {vr(Q[1])}, v{vL16}, {WS}, s{t[7]} offen offset:1024 sc1""")
        Lstart = a.label("attstart")
        a(f"{Lstart}:")
        for i in range(4):
            for r in range(8):
                a(f"v_mov_b32 v{V0(i)+r}, 0x3f803f80")
        a(f"s_mov_b32 s{sA}, s{sB0}")

        def ldK(i, imm):
            return a(f"buffer_load_dwordx4 {vr(K(i))}, v{vL16}, {WS}, s{sA} offen offset:{imm} sc1")

        def ldV(i, imm):
            a(f"s_mov_b64 exec, {sVM}")
            a(f"buffer_load_dwordx4 {vr(V0(i))}, v{vVOFF}, {WS}, s{sA} offen offset:{imm} sc1")
            a(f"buffer_load_dwordx4 {vr(V1(i))}, v{vVOFF}, {WS}, s{sA} offen offset:{imm+512} sc1")
            a("s_mov_b64 exec, -1")

        ldK(0, 0); ldV(0, 1024); ldK(1, 2048); ldV(1, 3072)
        a(f"s_add_u32 s{sA}, s{sA}, 4096")
        ldK(2, 0); ldV(2, 1024); ldK(3, 2048)
        a(f"s_add_u32 s{sA}, s{sA}, 3072")
        a(f"""s_mul_i32 s{sDM}, s{sJ4}, 7
s_add_u32 s{sDM}, s{sDM}, s{sW}
s_mul_i32 s{sDM}, s{sDM}, {33*1024}
s_add_u32 s{sDM}, s{sDM}, {WU:#x}
s_mul_i32 s{t[7]}, s{sW}, {33*1024}
s_mov_b32 m0, s{t[7]}
s_lshl_b32 s{sWOs}, s{sFB32}, 15
s_add_u32 s{sWOs}, s{sWOs}, {WO:#x}""")
        for r in range(16):
            a(f"v_mov_b32 v{O[0]+r}, 0\nv_mov_b32 v{O[1]+r}, 0")
        Lhave = a.label("havemax")
        a(f"s_waitcnt vmcnt(7)\ns_cmp_lg_u32 s{sRETRY}, 0\ns_cbranch_scc1 {Lhave}")

        def rowmax_to_c(src, q):
            a(f"v_mov_b32 v{src+1}, v{src}")
            a(f"v_permlane32_swap_b32 v{src}, v{src+1}")
            a(f"v_max_f32 v{src}, v{src}, v{src+1}")
            for r in range(16):
                a(f"v_sub_f32 v{C[q]+r}, 0, v{src}")

        def max16(dst, s, first):
            a(f"v_max3_f32 v{dst}, v{s}, v{s+1}, v{s if first else dst}")
            for r in range(2, 16, 2):
                a(f"v_max3_f32 v{dst}, v{s+r}, v{s+r+1}, v{dst}")

        for q in range(2):
            a(f"v_mfma_f32_32x32x16_bf16 {vr(S[q],16)}, {vr(K(0))}, {vr(Q[q])}, 0")
        for q in range(2):
            max16(S[q], S[q], True)
            rowmax_to_c(S[q], q)
        a(f"{Lhave}:")
        a(f"v_mfma_f32_32x32x16_bf16 {vr(S[0],16)}, {vr(K(0))}, {vr(Q[0])}, {vr(C[0],16)}")
        for r in range(8, 16):
            a(f"v_mov_b32 v{S[1]+r}, 0")
        a("s_nop 4")

        def unit(tile, q, after2=None, afterq=None, after1=None, beforeq=None):
            s, o = S[q], S[1 - q]
            pt = tile if q == 1 else tile - 1
            nt = tile if q == 0 else tile + 1
            e = lambda i: a(f"v_exp_f32 v{s+i}, v{s+i}")
            for i in range(3):
                e(i)
            a(f"v_smfmac_f32_32x32x32_bf16 {vr(O[1-q],16)}, {vr(V1(pt))}, {vr(o+8,8)}, v{vIDX}")
            if after2:
                after2()
            for i in range(3, 8):
                e(i)
            if beforeq:
                beforeq()
            a(f"v_mfma_f32_32x32x16_bf16 {vr(o,16)}, {vr(K(nt))}, {vr(Q[1-q])}, {vr(C[1-q],16)}")
            if afterq:
                afterq()
            for i in range(8, 12):
                e(i)
            a(f"v_smfmac_f32_32x32x32_bf16 {vr(O[q],16)}, {vr(V0(tile))}, {vr(s,8)}, v{vIDX}")
            if after1:
                after1()
            for i in range(12, 16):
                e(i)

        def tile_code(u, nwait, extras, tail=None):
            imm = (u % 2) * 2048
            unit(u, 0, after2=lambda: ldV(u + 3, imm), afterq=lambda: ldK(u + 4, imm + 1024),
                 after1=(lambda: a(f"s_add_u32 s{sA}, s{sA}, 4096")) if u % 2 else None)
            ex = list(extras)

            def x1():
                if ex:
                    a(ex.pop(0))

            def x2():
                while ex:
                    a(ex.pop(0))
                if tail:
                    a(tail)
            unit(u, 1, after2=lambda: a(f"s_waitcnt vmcnt({nwait})"), afterq=x1, after1=x2)

        self.stamp("p2_begin")
        Lloop = a.label("att")
        a(f"s_mov_b32 s{sCNT}, 11\n.p2align 4\n{Lloop}:")
        dma = lambda k: f"buffer_load_dwordx4 v{vL16}, {WS}, s{sDM} offen offset:{k*1024} lds"
        tile_code(0, 7, [dma(0)])
        tile_code(1, 8, [dma(1)])
        tile_code(2, 9, [dma(2)])
        tile_code(3, 9, [f"s_add_u32 m0, m0, 3072\ns_add_u32 s{sDM}, s{sDM}, 3072"],
                  tail=f"s_sub_u32 s{sCNT}, s{sCNT}, 1")
        a(f"s_cbranch_scc0 {Lloop}")
        prev = [1, 0]
        for u in range(16):
            ex = []
            for k in range(2):
                i = 2 * u + k
                ex.append(f"buffer_load_dwordx4 {ar(4*i)}, v{vL16}, {WS}, s{sWOs} offen offset:{(i%4)*1024}")
            tile_code(u, 7 + sum(prev), ex, tail=f"s_add_u32 s{sWOs}, s{sWOs}, 4096" if u % 2 else None)
            prev = [prev[1], 2]
        a("s_nop 1")
        a(f"v_smfmac_f32_32x32x32_bf16 {vr(O[1],16)}, {vr(V1(63))}, {vr(S[1]+8,8)}, v{vIDX}")
        self.stamp("p2_loop")
        Lok = a.label("attok")
        a(f"""s_mov_b32 s{t[7]}, {f2u(2.0**30):#x}
v_max_f32 v{S[0]}, v{O[0]+8}, v{O[1]+8}
v_add_f32 v{S[0]+1}, v{O[0]+8}, v{O[1]+8}
v_cmp_nge_f32 vcc, s{t[7]}, v{S[0]+1}
s_cbranch_vccz {Lok}
s_cmp_lg_u32 s{sRETRY}, 0
s_cbranch_scc1 {Lok}""")
        M = (O[0], O[1])
        Lm = a.label("truemax")
        a(f"""s_waitcnt vmcnt(0)
s_mov_b32 s{sRETRY}, 1
s_mov_b32 s{sA}, s{sB0}
s_mov_b32 s{sCNT}, 63
v_mov_b32 v{M[0]}, 0xff800000
v_mov_b32 v{M[1]}, 0xff800000
{Lm}:""")
        ldK(0, 0)
        a(f"s_add_u32 s{sA}, s{sA}, 2048\ns_waitcnt vmcnt(0)")
        for q in range(2):
            a(f"v_mfma_f32_32x32x16_bf16 {vr(S[q],16)}, {vr(K(0))}, {vr(Q[q])}, 0")
        for q in range(2):
            max16(M[q], S[q], False)
        a(f"s_sub_u32 s{sCNT}, s{sCNT}, 1\ns_cbranch_scc0 {Lm}")
        for q in range(2):
            rowmax_to_c(M[q], q)
        a(f"s_branch {Lstart}")
        a(f"{Lok}:")
        a(f"""s_lshl_b32 s{t[7]}, s{tb32}, 5
s_add_u32 s{t[7]}, s{t[7]}, s{head}
s_lshl_b32 s{t[7]}, s{t[7]}, 10
s_add_u32 s{t[7]}, s{t[7]}, s{sO}
s_add_u32 s{t[8]}, s{t[7]}, 0x8000""")
        for q in range(2):
            a(f"v_rcp_f32 v{O[q]+8}, v{O[q]+8}")
        for q in range(2):
            for i in range(4):
                a(f"v_pk_mul_f32 {vr(O[q]+2*i,2)}, {vr(O[q]+2*i,2)}, {vr(O[q]+8,2)} op_sel_hi:[1,0]")
            for i in range(4):
                a(f"v_cvt_pk_bf16_f32 v{S[q]+i}, v{O[q]+2*i}, v{O[q]+2*i+1}")
            a(f"buffer_store_dwordx4 {vr(S[q])}, v{vL16}, {WS}, s{t[7+q]} offen sc1")
        self.stamp("p2_done")
        self.signal()
        self.maybe_stop("p2")
        self.wait_flags(vP3)
        self.stamp("p2_wait")

    def resid_epilogue(self, acc, sx, sst, final):
        a = self.a
        t = sT
        for i in range(8):
            a(f"v_cvt_pk_bf16_f32 v{vRES+i}, v{acc+2*i}, v{acc+2*i+1}")
        if final:
            Lfin, Ljoin = a.label("fin"), a.label("join")
            a(f"s_cmp_lg_u32 s{sL}, 0\ns_cbranch_scc1 {Lfin}")
        a(f"""s_lshl_b32 s{t[0]}, s{sTB32B}, 15
s_lshl_b32 s{t[1]}, s{sFB32}, 11
s_add_u32 s{t[0]}, s{t[0]}, s{t[1]}
s_add_u32 s{t[0]}, s{t[0]}, s{sx}
buffer_store_dwordx4 {vr(vRES)}, v{vL16}, {WS}, s{t[0]} offen sc1
buffer_store_dwordx4 {vr(vRES+4)}, v{vL16}, {WS}, s{t[0]} offen offset:1024 sc1
s_lshl_b32 s{t[0]}, s{sTB32B}, 12
s_lshl_b32 s{t[1]}, s{sFB32}, 8
s_add_u32 s{t[0]}, s{t[0]}, s{t[1]}
s_add_u32 s{t[0]}, s{t[0]}, s{sst}""")
        self.stats_store(acc, acc + 16, t[0])
        if final:
            a(f"s_branch {Ljoin}\n{Lfin}:")
            self.srd(SA, sOUT, 2048 * 512 * 2)
            x, y = acc, acc + 1
            a(f"""v_and_b32 v{x}, 31, v0
v_lshrrev_b32 v{y}, 5, v0
v_lshlrev_b32 v{x}, 10, v{x}
v_lshl_or_b32 v{x}, v{y}, 4, v{x}
s_lshl_b32 s{t[0]}, s{sTB32B}, 15
s_lshl_b32 s{t[1]}, s{sFB32}, 6
s_add_u32 s{t[0]}, s{t[0]}, s{t[1]}
buffer_store_dwordx4 {vr(vRES)}, v{x}, {SA}, s{t[0]} offen
buffer_store_dwordx4 {vr(vRES+4)}, v{x}, {SA}, s{t[0]} offen offset:32""")
            self.stamp("final")
            a(f"s_branch L_end\n{Ljoin}:")

    def p3(self):
        a = self.a
        t = sT
        a(f"""s_lshl_b32 s{t[0]}, s{sTB32B}, 15
s_add_u32 s{t[0]}, s{t[0]}, s{sO}""")
        ot = self.load_frags(lambda i: ar(128 + 4 * i), 32, t[0])
        ACC = 24
        self.unpack_res(ACC)
        for ks in range(32):
            a.wait(ot[ks])
            a(f"v_mfma_f32_32x32x16_bf16 {vr(ACC,16)}, {ar(4*ks)}, {ar(128+4*ks)}, {vr(ACC,16)}")
        self.stamp("p3_mma")
        self.resid_epilogue(ACC, sXMID, sSMID, False)
        self.stamp("p3_done")
        self.signal()
        self.maybe_stop("p3")
        self.wait_flags(vP4)
        self.stamp("p3_wait")

    def w2_reg(self, i):
        return ar(4 * i) if i < 32 else vr(160 + 4 * (i - 32))

    def w2_setup(self, s0, s1):
        a = self.a
        t = sT
        a(f"""s_mul_i32 s{s0}, s{sFB32}, {112*1024}
s_xor_b32 s{s1}, s{sFB32}, 1
s_mul_i32 s{s1}, s{s1}, {112*1024}
s_mul_i32 s{t[13]}, s{sW}, {28*1024}
s_add_u32 s{t[13]}, s{t[13]}, {W2F:#x}
s_add_u32 s{s0}, s{s0}, s{t[13]}
s_add_u32 s{s1}, s{s1}, s{t[13]}""")

    def w2_load(self, i, s0, s1):
        ks, h = divmod(i, 2)
        s = (s0, s1)[h]
        txt = f"buffer_load_dwordx4 {self.w2_reg(i)}, v{vL16}, {WS}, s{s} offen offset:{(ks%4)*1024}"
        if ks % 4 == 3:
            txt += f"\ns_add_u32 s{s}, s{s}, 4096"
        return txt

    def p4(self):
        a = self.a
        t = sT
        tb32, sHo, sD, sW2a, sW2b = t[2], t[3], t[4], t[5], t[6]
        a(f"""s_lshl_b32 s{tb32}, s{sTB4}, 2
s_add_u32 s{tb32}, s{tb32}, s{sW}
s_lshl_b32 s{t[0]}, s{tb32}, 15
s_add_u32 s{t[0]}, s{t[0]}, s{sXMID}""")
        xt = self.load_frags(lambda i: ar(128 + 4 * i), 32, t[0])
        ST = 120
        stt = self.stats_load(ST, sSMID, tb32, t[1])
        a(f"""s_mul_i32 s{sHo}, s{tb32}, 112
s_mul_i32 s{t[0]}, s{sJ4}, 7
s_add_u32 s{sHo}, s{sHo}, s{t[0]}
s_lshl_b32 s{sHo}, s{sHo}, 10
s_add_u32 s{sHo}, s{sHo}, s{sH}
s_add_u32 s{t[0]}, s{t[0]}, 4
s_mul_i32 s{sD}, s{t[0]}, {33*1024}
s_lshl_b32 s{t[7]}, s{sW}, 13
s_add_u32 s{sD}, s{sD}, s{t[7]}
s_add_u32 s{sD}, s{sD}, {WU:#x}""")
        self.w2_setup(sW2a, sW2b)
        ACC = lambda b: 24 + 16 * (b % 4)
        RING, R = 88, 8
        MEAN, RSTD, C1, KK, BX = 136, 137, 138, 139, 140
        TMP, PK = 144, 152
        seq = []
        for p in self.passes:
            for ks in range(33):
                for b in p:
                    seq.append((b, ks))
        N = len(seq)
        slot = lambda b: (b % 4) * 33 * 1024
        last_of = {b: max(n for n, (bb, _) in enumerate(seq) if bb == b) for b in range(7)}
        first_of = {b: min(n for n, (bb, _) in enumerate(seq) if bb == b) for b in range(7)}
        rd = {}
        dma_tok = {}
        vq = []
        side = []

        def dma_block(b):
            L = [f"s_add_u32 m0, s{t[7]}, {slot(b)}"]
            for i in range(9):
                L.append(("dma", b, f"buffer_load_dwordx4 v{vL16}, {WS}, s{sD} offen offset:{(i%4)*1024} lds"))
                if i % 4 == 3:
                    L.append(f"s_add_u32 m0, m0, 4096\ns_add_u32 s{sD}, s{sD}, 4096")
            L.append(f"s_add_u32 s{sD}, s{sD}, {33*1024-8192}")
            return L

        def issue(n):
            if n >= N:
                return
            b, ks = seq[n]
            if b >= 4 and n == first_of[b]:
                while any(isinstance(x, tuple) and x[1] == b for x in vq):
                    pop_vq()
                a.wait(dma_tok[b])
                a("s_barrier")
            va, imm = self.lds_addr(slot(b) + ks * 1024)
            rd[n] = a(f"ds_read_b128 {vr(RING+4*(n%R))}, v{va} offset:{imm}")

        def pop_vq():
            x = vq.pop(0)
            if isinstance(x, tuple):
                tok = a(x[2])
                dma_tok[x[1]] = tok
            else:
                a(x)

        def swiglu(b):
            g, u = ACC(b), ACC(b) + 8
            L = []
            for i in range(8):
                L.append(f"v_mul_f32 v{g+i}, v{C1}, v{g+i}")
            for i in range(8):
                L.append(f"v_exp_f32 v{TMP+i}, v{g+i}")
                L.append(f"v_mul_f32 v{u+i}, v{g+i}, v{u+i}")
            for i in range(8):
                L.append(f"v_fma_f32 v{TMP+i}, v{TMP+i}, v{KK}, v{KK}")
            for i in range(8):
                L.append(f"v_rcp_f32 v{TMP+i}, v{TMP+i}")
            for i in range(8):
                L.append(f"v_mul_f32 v{u+i}, v{u+i}, v{TMP+i}")
            pk = PK + 4 * (b % 2)
            for i in range(4):
                L.append(f"v_cvt_pk_bf16_f32 v{pk+i}, v{u+2*i}, v{u+2*i+1}")
            if b == 4:
                L.append(f"s_add_u32 s{sHo}, s{sHo}, 4096")
            L.append(f"buffer_store_dwordx4 {vr(pk)}, v{vL16}, {WS}, s{sHo} offen offset:{(b%4)*1024} sc1")
            return L

        for n in range(R - 1):
            issue(n)
        np1 = len(self.passes[0])
        w2q = [self.w2_load(i, sW2a, sW2b) for i in range(self.nw2_in)]
        pending_sw = []
        freed = set()
        for n in range(N):
            b, ks = seq[n]
            if n == 22 * np1:
                a.wait(stt)
                side += self.stats_math(ST, MEAN, RSTD, BX) + [
                    f"v_mul_f32 v{C1}, {f2u(-LOG2E):#x}, v{RSTD}",
                    f"v_rcp_f32 v{KK}, v{RSTD}",
                    "s_nop 0",
                    f"v_mul_f32 v{KK}, {f2u(-LOG2E):#x}, v{KK}"]
            if n == 32 * np1:
                while side:
                    a(side.pop(0))
            if ks == 0 and b >= 4:
                assert not any(pb % 4 == b % 4 for pb, _ in pending_sw)
                while any(f"; blk{b-4}" in s for s in side):
                    a(side.pop(0))
            w = [rd[n]]
            if n < 23 * np1 and n % np1 == 0:
                w.append(xt[ks])
            a.wait(*w)
            xb = ar(128 + 4 * ks) if ks < 32 else vr(BX)
            c = vr(ACC(b), 16) if ks else "0"
            a(f"v_mfma_f32_32x32x16_bf16 {vr(ACC(b),16)}, {vr(RING+4*(n%R))}, {xb}, {c}")
            if n == last_of[b]:
                pending_sw.append((b, n + 3))
                if b + 4 <= 6:
                    freed.add(b)
                if all(last_of[bb] <= n for bb in [x for p in self.passes if b in p for x in p]) and freed:
                    a("s_barrier")
                    for fb in sorted(freed):
                        vq += dma_block(fb + 4)
                    freed.clear()
            issue(n + R - 1)
            while pending_sw and pending_sw[0][1] <= n:
                pb = pending_sw.pop(0)[0]
                side += [s + f" ; blk{pb}" for s in swiglu(pb)]
            budget = 3
            if vq:
                pop_vq()
                while vq and not isinstance(vq[0], tuple):
                    pop_vq()
                budget = 2
            elif w2q and n >= 24 * np1 and n % 3 == 0:
                a(w2q.pop(0))
                budget = 2
            while side and budget > 0:
                s = side.pop(0)
                a(s)
                budget -= 2 if s.startswith(("v_exp", "v_rcp")) else 1
        self.stamp("p4_mma")
        for pb, _ in pending_sw:
            side += swiglu(pb)
        for s in side:
            a(s)
        assert not vq
        rest = w2q + [self.w2_load(i, sW2a, sW2b) for i in range(self.nw2_in, 56)]
        self.stamp("p4_done")
        self.signal()
        self.maybe_stop("p4")
        for s in rest:
            a(s)
        self.wait_flags(vP5)
        self.stamp("p4_wait")

    def p5(self):
        a = self.a
        t = sT
        s0, s1 = t[0], t[1]
        a(f"""s_mul_i32 s{s0}, s{sTB32B}, {112*1024}
s_xor_b32 s{s1}, s{sTB32B}, 1
s_mul_i32 s{s1}, s{s1}, {112*1024}
s_mul_i32 s{t[2]}, s{sW}, {28*1024}
s_add_u32 s{t[2]}, s{t[2]}, s{sH}
s_add_u32 s{s0}, s{s0}, s{t[2]}
s_add_u32 s{s1}, s{s1}, s{t[2]}""")
        NR = 50
        hreg = lambda i: ar(128 + 4 * (i % NR)) if (i % NR) < 32 else vr(88 + 4 * ((i % NR) - 32))
        ht = {}

        def ldh(i):
            ks, h = divmod(i, 2)
            s = (s0, s1)[h]
            ht[i] = a(f"buffer_load_dwordx4 {hreg(i)}, v{vL16}, {WS}, s{s} offen offset:{(ks%4)*1024} sc1")
            if ks % 4 == 3:
                a(f"s_add_u32 s{s}, s{s}, 4096")

        for i in range(NR):
            ldh(i)
        ACC = lambda s: 24 + 16 * s
        self.unpack_res(ACC(0))
        for ks in range(28):
            for bq in range(2):
                a.wait(ht[2 * ks + bq])
                for aq in range(2):
                    s = 2 * bq + aq
                    c = vr(ACC(s), 16) if (ks or s == 0) else "0"
                    a(f"v_mfma_f32_32x32x16_bf16 {vr(ACC(s),16)}, {self.w2_reg(2*ks+aq)}, {hreg(2*ks+bq)}, {c}")
            if ks >= 1 and NR + 2 * (ks - 1) < 56:
                ldh(NR + 2 * (ks - 1))
                ldh(NR + 2 * (ks - 1) + 1)
        self.stamp("p5_mma")
        AD = 88
        for s in range(1, 4):
            a(f"""s_xor_b32 s{t[3]}, s{sW}, {s}
s_mul_i32 s{t[3]}, s{t[3]}, {3*4096}
s_add_u32 s{t[3]}, s{t[3]}, {RED + (s-1)*4096}
v_add_u32 v{AD+s}, s{t[3]}, v{vL16}""")
        a(f"""s_mul_i32 s{t[3]}, s{sW}, {3*4096}
s_add_u32 s{t[3]}, s{t[3]}, {RED}
v_add_u32 v{AD}, s{t[3]}, v{vL16}""")
        for s in range(1, 4):
            for qd in range(4):
                a(f"ds_write_b128 v{AD+s}, {vr(ACC(s)+4*qd)} offset:{qd*1024}")
        a("s_waitcnt lgkmcnt(0)\ns_barrier")
        toks = []
        for s in range(3):
            for qd in range(4):
                toks.append(a(f"ds_read_b128 {vr(ACC(s+1)+4*qd)}, v{AD} offset:{s*4096+qd*1024}"))
        for s in range(3):
            for qd in range(4):
                a.wait(toks[4 * s + qd])
                for h in range(2):
                    r = 4 * qd + 2 * h
                    a(f"v_pk_add_f32 {vr(ACC(0)+r,2)}, {vr(ACC(0)+r,2)}, {vr(ACC(s+1)+r,2)}")
        self.resid_epilogue(ACC(0), sXOUT, sSOUT, True)
        self.stamp("p5_done")
        self.signal()
        self.maybe_stop("p5")

    def build(self):
        a = self.a
        self.prologue()
        self.p0()
        self.dma_wq()
        a("L_layer:")
        self.layer_bases()
        self.p1()
        self.p2()
        self.p3()
        self.p4()
        self.p5()
        a(f"s_mov_b32 s{sL}, 1")
        self.dma_wq()
        self.wait_flags(vP1)
        self.stamp("p5_wait")
        a("s_branch L_layer")
        a("L_end:")
        if self.stamps:
            t = sT
            a(f"""s_lshl_b32 s{t[0]}, s2, 2
s_add_u32 s{t[0]}, s{t[0]}, s{sW}
s_lshl_b32 s{t[0]}, s{t[0]}, 8
s_add_u32 s{t[0]}, s{t[0]}, {TS:#x}
buffer_store_dword v{vTS}, v{vL4}, {WS}, s{t[0]} offen""")
        a("L_exit:\ns_endpgm")
        body = a.text(verbose=os.environ.get("VERB") == "1")
        head = f"""; Fused 2 x (LayerNorm + MHA + residual, LayerNorm + SwiGLU + residual), one persistent launch.
; @launch grid=(256,1,1) block=(256,1,1) lds={LDS_BYTES}
.amdgcn_target "amdgcn-amd-amdhsa--gfx950"
.text
.globl {NAME}_kernel
.p2align 8
.type {NAME}_kernel,@function
{NAME}_kernel:
"""
        tail = f"""
.section .rodata,"a"
.p2align 6
.amdhsa_kernel {NAME}_kernel
  .amdhsa_next_free_vgpr 512
  .amdhsa_next_free_sgpr 102
  .amdhsa_accum_offset 256
  .amdhsa_group_segment_fixed_size 0
  .amdhsa_kernarg_size 80
  .amdhsa_user_sgpr_count 2
  .amdhsa_user_sgpr_kernarg_segment_ptr 1
  .amdhsa_system_sgpr_workgroup_id_x 1
.end_amdhsa_kernel
"""
        return head + body + tail


if __name__ == "__main__":
    import argparse
    ap = argparse.ArgumentParser()
    ap.add_argument("-o", default=f"cdna_kernels/{NAME}.s")
    ap.add_argument("--stamps", action="store_true")
    ap.add_argument("--stop", default=None)
    ap.add_argument("--p4map", default="A")
    ap.add_argument("--nw2", type=int, default=32)
    args = ap.parse_args()
    g = Gen(stamps=args.stamps, stop_after=args.stop, p4map=args.p4map, nw2_in=args.nw2)
    txt = g.build()
    open(args.o, "w").write(txt)
    if args.stamps:
        open(args.o + ".names", "w").write("\n".join(g.stamp_names))
    print("written", args.o, len(txt), "bytes")
```
